```python
import torch

def _softmax(x, axis=-1):
    return torch.softmax(x, dim=axis)
def _gelu(x):
    return torch.nn.functional.gelu(x, approximate="tanh")
def _silu(x):
    return torch.nn.functional.silu(x)
def _sigmoid(x):
    return torch.sigmoid(x)
def _layernorm(x, axis=-1, eps=1e-5):
    m = x.mean(dim=axis, keepdim=True)
    v = x.var(dim=axis, keepdim=True, unbiased=False)
    return (x - m) / torch.sqrt(v + eps)
def _scatter_add(tgt, idx, src, axis=0):
    return tgt.clone().index_add_(axis, idx, src)
def _segment_sum(src, seg, n):
    out = torch.zeros((n,) + src.shape[1:], dtype=src.dtype)
    return out.index_add_(0, seg, src)
def _pad(x, pw):
    flat = tuple(v for pair in reversed(pw) for v in pair)
    return torch.nn.functional.pad(x, flat)

kernel_name = 'gated_mix__linear_kernel_hedgehog__mixer_s_mlp__prompt'

def setup_inputs():

    _w = (lambda a: (lambda t: t.to(torch.bfloat16) if t.is_floating_point() else t)(torch.as_tensor(a)))
    def _A_setup():
        B, S, D, H = 1, 2048, 640, 32
        Dh = D // H
        return {
            "x": _w((lambda *s: torch.randn(*s, dtype=torch.bfloat16) * 0.05)(B, S, D)),
            "wqkv": _w((lambda *s: torch.randn(*s, dtype=torch.bfloat16) * 3.2)(D, 3 * D)),
            "w_phi": _w((lambda *s: torch.randn(*s, dtype=torch.bfloat16) * 3.2)(H, Dh, Dh) * (Dh ** -0.5)),
            "wo": _w((lambda *s: torch.randn(*s, dtype=torch.bfloat16) * 1.6)(D, D)),
        }
    _A_in = _A_setup()

    def _B_setup():
        B, S, D, F = 1, 2048, 640, 1536
        return {
            "x":  _w((lambda *s: torch.randn(*s, dtype=torch.bfloat16) * 0.05)(B, S, D)),
            "w1": _w((lambda *s: torch.randn(*s, dtype=torch.bfloat16) * 3.2)(D, D) * (D ** -0.5)),
            "w2": _w((lambda *s: torch.randn(*s, dtype=torch.bfloat16) * 3.2)(D, D) * (D ** -0.5)),
            "w3": _w((lambda *s: torch.randn(*s, dtype=torch.bfloat16) * 3.2)(D, F) * (D ** -0.5)),
            "w4": _w((lambda *s: torch.randn(*s, dtype=torch.bfloat16) * 3.2)(F, D) * (F ** -0.5)),
        }
    _B_in = _B_setup()

    return {
        "A_x": _A_in["x"],
        "A_wqkv": _A_in["wqkv"],
        "A_w_phi": _A_in["w_phi"],
        "A_wo": _A_in["wo"],
        "B_x": _B_in["x"],
        "B_w1": _B_in["w1"],
        "B_w2": _B_in["w2"],
        "B_w3": _B_in["w3"],
        "B_w4": _B_in["w4"],
        "gate_w": _w((lambda *s: torch.randn(*s, dtype=torch.bfloat16) * 0.05)(640) * 16.0),
    }

def reference(A_x, A_wqkv, A_w_phi, A_wo, B_x, B_w1, B_w2, B_w3, B_w4, gate_w):
    def _A_ref(x, wqkv, w_phi, wo):
        B, S, D = x.shape
        H = 32; Dh = D // H
        qkv = (lambda x, *d: x.permute(*d))((x @ wqkv).reshape(B, S, 3, H, Dh), 2, 0, 3, 1, 4)
        q, k, v = qkv[0], qkv[1], qkv[2]
        pq = torch.einsum("bhsd,hdf->bhsf", q, w_phi)
        pk = torch.einsum("bhsd,hdf->bhsf", k, w_phi)
        phi_q = torch.concatenate([_softmax(pq, axis=-1), _softmax(-pq, axis=-1)], axis=-1)
        phi_k = torch.concatenate([_softmax(pk, axis=-1), _softmax(-pk, axis=-1)], axis=-1)
        kv = torch.einsum("bhsf,bhsd->bhfd", phi_k, v)
        z  = torch.einsum("bhsf->bhf", phi_k)
        num = torch.einsum("bhqf,bhfd->bhqd", phi_q, kv)
        den = torch.einsum("bhqf,bhf->bhq", phi_q, z)[..., None] + 1e-6
        o = num / den
        return (lambda x, *d: x.permute(*d))(o, 0, 2, 1, 3).reshape(B, S, D) @ wo

    def _B_ref(x, w1, w2, w3, w4):
        B, S, D = x.shape
        h = _gelu(_layernorm(x, axis=-1) @ w1)
        c = D // 4
        g0 = _pad(h[:, :, 0*c:1*c], ((0, 0), (1, 0), (0, 0)))[:, :S, :]
        g1 = _pad(h[:, :, 1*c:2*c], ((0, 0), (0, 1), (0, 0)))[:, 1:, :]
        g2 = _pad(h[:, :, 2*c:3*c], ((0, 0), (2, 0), (0, 0)))[:, :S, :]
        g3 = _pad(h[:, :, 3*c:   ], ((0, 0), (0, 2), (0, 0)))[:, 2:, :]
        hs = torch.concatenate([g0, g1, g2, g3], axis=-1) @ w2
        x1 = x + hs
        h2 = _gelu(_layernorm(x1, axis=-1) @ w3) @ w4
        return x1 + h2

    x = A_x
    g = _sigmoid((x * gate_w).sum(-1, keepdims=True))
    a = _A_ref(x, A_wqkv, A_w_phi, A_wo)
    b = _B_ref(x, B_w1, B_w2, B_w3, B_w4)
    return g * a + (1 - g) * b
```

```python
import re

def _regs(tok):
    tok = tok.strip()
    tok = re.sub(r'^(-|abs\(|\|)+', '', tok)
    tok = re.sub(r'(\)|\|)+$', '', tok)
    m = re.fullmatch(r'([vas])(\d+)', tok)
    if m: return [(m.group(1), int(m.group(2)))]
    m = re.fullmatch(r'([vas])\[(\d+):(\d+)\]', tok)
    if m: return [(m.group(1), i) for i in range(int(m.group(2)), int(m.group(3)) + 1)]
    if tok == 'vcc': return [('s', 'vcc')]
    if tok in ('vcc_lo', 'vcc_hi'): return [('s', 'vcc')]
    if tok == 'exec': return [('s', 'exec')]
    if tok == 'm0': return [('s', 'm0')]
    return []

TRANS = ('v_exp_f32', 'v_log_f32', 'v_rcp_f32', 'v_rsq_f32', 'v_sqrt_f32', 'v_sin_f32', 'v_cos_f32', 'v_rcp_iflag_f32')

class Ins:
    __slots__ = ('text', 'op', 'defs', 'uses', 'kind', 'srcC', 'passes', 'storedata', 'ws')
    def __init__(self, text):
        self.text = text
        t = text.split(';')[0].strip()
        parts = t.split(None, 1)
        op = parts[0]
        base = re.sub(r'_(e32|e64|dpp|sdwa)$', '', op)
        self.op = base
        ops = []
        if len(parts) > 1:
            cur = ''; depth = 0
            for ch in parts[1]:
                if ch in '[(': depth += 1
                if ch in '])': depth -= 1
                if ch == ',' and depth == 0:
                    ops.append(cur.strip()); cur = ''
                else: cur += ch
            ops.append(cur.strip())
            last = ops[-1].split()
            mods = last[1:]
            ops[-1] = last[0] if last else ''
        else:
            mods = []
        self.defs = []; self.uses = []; self.srcC = []; self.passes = 0; self.storedata = []
        self.ws = 1
        R = [_regs(o) for o in ops]
        if base.startswith('v_mfma'):
            self.kind = 'mfma'
            self.defs = R[0]; self.uses = R[1] + R[2]; self.srcC = R[3]
            self.passes = 8 if '32x32x16' in base else 4
        elif base == 's_nop':
            self.kind = 'salu'; self.ws = int(ops[0], 0) + 1
        elif base.startswith('v_cmp'):
            self.kind = 'valu'
            self.defs = R[0] + ([('s', 'exec')] if base.startswith('v_cmpx') else [])
            self.uses = sum(R[1:], [])
        elif base in ('v_readfirstlane_b32', 'v_readlane_b32'):
            self.kind = 'valu'; self.defs = R[0]; self.uses = sum(R[1:], [])
        elif base.startswith('v_permlane') and 'swap' in base:
            self.kind = 'valu'; self.defs = R[0] + R[1]; self.uses = R[0] + R[1]
        elif base in ('v_add_co_u32', 'v_sub_co_u32', 'v_addc_co_u32', 'v_subb_co_u32'):
            self.kind = 'valu'; self.defs = R[0] + R[1]; self.uses = sum(R[2:], [])
        elif base.startswith('v_'):
            self.kind = 'valu'; self.defs = R[0]; self.uses = sum(R[1:], [])
            if base in ('v_fmac_f32', 'v_dot2c_f32_bf16', 'v_pk_fmac_f16') or op.endswith('dpp') or op.endswith('sdwa'):
                self.uses = self.uses + R[0]
            if base == 'v_cndmask_b32' and len(ops) == 3: self.uses = self.uses + [('s', 'vcc')]
        elif base.startswith('ds_'):
            self.kind = 'ds'
            if 'read' in base or 'permute' in base or 'swizzle' in base:
                self.defs = R[0]; self.uses = sum(R[1:], [])
            else:
                self.uses = sum(R, [])
        elif base.startswith('buffer_') or base.startswith('global_'):
            self.kind = 'vmem'
            islds = 'lds' in mods or '_lds_' in base
            if base in ('buffer_inv', 'buffer_wbl2'):
                pass
            elif islds:
                self.uses = sum(R, []) + [('s', 'm0')]
            elif 'load' in base:
                self.defs = R[0]; self.uses = sum(R[1:], [])
            elif 'store' in base:
                self.uses = sum(R, [])
                data = R[0] if base.startswith('buffer_') else R[1]
                if len(data) >= 3: self.storedata = data
            elif 'atomic' in base:
                self.uses = sum(R, [])
                if 'sc0' in mods: self.defs = R[0]
        elif base.startswith('s_'):
            self.kind = 'salu'
            if base.startswith('s_cmp') or base.startswith('s_cbranch') or base in ('s_branch', 's_waitcnt', 's_barrier', 's_endpgm', 's_sleep', 's_setprio'):
                self.uses = sum(R, [])
            else:
                self.defs = R[0] if R else []
                self.uses = sum(R[1:], [])
                if 'saveexec' in base: self.defs = self.defs + [('s', 'exec')]
        else:
            raise ValueError("unknown instr: " + text)

def need_ws(p, c):
    n = 0
    pd = set(p.defs)
    cu = set(c.uses); cd = set(c.defs); cc = set(c.srcC)
    vec = lambda s: {r for r in s if r[0] in 'va'}
    sca = lambda s: {r for r in s if r[0] == 's'}
    if p.kind == 'valu':
        if c.kind == 'mfma' and vec(pd) & (cu | cc): n = max(n, 2)
        if c.kind == 'mfma' and ('s', 'exec') in pd: n = max(n, 4)
        if p.op in TRANS and c.kind in ('valu',) and vec(pd) & cu and c.op not in TRANS: n = max(n, 1)
        if p.op in TRANS and c.kind in ('valu',) and vec(pd) & cu and c.op in TRANS: n = max(n, 1)
        if c.op in ('v_readfirstlane_b32', 'v_readlane_b32') and vec(pd) & cu: n = max(n, 1)
        if c.op.startswith('v_permlane') and vec(pd) & cu: n = max(n, 2)
        if ('dpp' in c.text) and vec(pd) & cu: n = max(n, 2)
        if sca(pd):
            if c.kind == 'valu' and sca(pd) & cu: n = max(n, 2)
            if c.kind == 'vmem' and sca(pd) & cu: n = max(n, 5)
            if c.op in ('v_readlane_b32', 'v_writelane_b32') and sca(pd) & cu: n = max(n, 4)
            if ('s', 'exec') in pd and (c.op.startswith('v_permlane') or c.op.startswith('v_read')): n = max(n, 4)
            if ('s', 'exec') in pd and 'dpp' in c.text: n = max(n, 5)
            if c.kind == 'salu' and sca(pd) & cu: n = max(n, 1)
        if ('sdwa' in p.text or 'op_sel' in p.text) and c.kind == 'valu' and vec(pd) & (cu | cd): n = max(n, 1)
    if p.kind == 'mfma':
        big = {4: 8, 8: 12}[p.passes]; ovl = {4: 6, 8: 10}[p.passes]; war = {4: 3, 8: 7}[p.passes]
        if c.kind == 'mfma':
            if pd & cu: n = max(n, big)
            if pd & cc:
                if not (list(p.defs) == list(c.srcC) and p.passes == c.passes): n = max(n, ovl)
            elif pd & cd: n = max(n, ovl)
        elif c.kind in ('valu', 'ds', 'vmem'):
            if pd & (cu | cd): n = max(n, big)
            if c.kind == 'valu' and set(p.srcC) & cd: n = max(n, war)
    if p.kind == 'salu' and ('s', 'm0') in pd and c.kind == 'vmem' and ('s', 'm0') in cu: n = max(n, 1)
    if p.kind == 'vmem' and p.storedata and set(p.storedata) & cd: n = max(n, 2)
    return n

class Asm:
    def __init__(self):
        self.items = []
        self.uid = 0
    def __call__(self, text):
        for line in text.split('\n'):
            s = line.strip()
            if not s: continue
            if s.startswith(';') or s.startswith('.') and not s.endswith(':'):
                self.items.append(('raw', s))
            elif s.endswith(':'):
                self.items.append(('label', s[:-1]))
            else:
                self.items.append(('i', Ins(s)))
    def raw(self, text): self.items.append(('raw', text))
    def label(self, name): self.items.append(('label', name))
    def newlabel(self, base='L'):
        Asm.GUID = getattr(Asm, 'GUID', 0) + 1
        return f"{base}_{Asm.GUID}"
    def finalize(self):
        items = self.items
        WIN = 14
        def run(items):
            out = []; hist = []
            added = 0
            for it in items:
                if it[0] == 'i':
                    c = it[1]
                    dist = 0; req = 0
                    for p in reversed(hist):
                        n = need_ws(p, c)
                        if n > dist: req = max(req, n - dist)
                        dist += p.ws
                        if dist >= WIN: break
                    if req > 0:
                        nop = Ins(f"s_nop {req-1}")
                        out.append(('i', nop)); hist.append(nop); added += 1
                    out.append(it); hist.append(c)
                    if c.op in ('s_branch', 's_endpgm'): hist = []
                    hist = hist[-WIN:]
                else:
                    out.append(it)
            return out, added
        items, _ = run(items)
        pos = {it[1]: i for i, it in enumerate(items) if it[0] == 'label'}
        changed = True
        while changed:
            changed = False
            pos = {it[1]: i for i, it in enumerate(items) if it[0] == 'label'}
            for i, it in enumerate(items):
                if it[0] != 'i': continue
                c = it[1]
                if not (c.op.startswith('s_cbranch') or c.op == 's_branch'): continue
                tgt = c.text.split(';')[0].split()[-1]
                if tgt not in pos: continue
                tail = [x[1] for x in items[max(0, i - 40):i + 1] if x[0] == 'i'][-WIN:]
                head = [x[1] for x in items[pos[tgt]:pos[tgt] + 40] if x[0] == 'i'][:WIN]
                req = 0; hd = 0
                for cons in head:
                    dist = hd
                    for p in reversed(tail):
                        n = need_ws(p, cons)
                        if n > dist: req = max(req, n - dist)
                        dist += p.ws
                    hd += cons.ws
                    if cons.op in ('s_branch', 's_endpgm'): break
                if req > 0:
                    items.insert(i, ('i', Ins(f"s_nop {req-1}")))
                    changed = True
                    break
        self.items = items
    def text(self):
        out = []
        for it in self.items:
            if it[0] == 'i': out.append('    ' + it[1].text)
            elif it[0] == 'label': out.append(it[1] + ':')
            else: out.append(it[1])
        return '\n'.join(out) + '\n'

def interleave(main, fill, per=1, start=0):
    out = []; fi = 0
    for i, m in enumerate(main):
        out.append(m)
        if i >= start:
            k = per(i) if callable(per) else per
            for _ in range(k):
                if fi < len(fill): out.append(fill[fi]); fi += 1
    out.extend(fill[fi:])
    return out
```

```python
from asmlib import *
from layout import *
import math
LOG2E = math.log2(math.e)
import struct
def f2u(x): return struct.unpack('<I', struct.pack('<f', x))[0]

P_X, P_WQKV, P_WPHI, P_WO, P_BX, P_W1, P_W2, P_W3, P_W4, P_GATE, P_OUT, P_DBG, P_WS = [16 + 2*i for i in range(13)]

def kernel_begin(a, name, nwg):
    a.raw(f".globl {name}\n.p2align 8\n.type {name},@function")
    a.label(name)
    a(f"s_cmp_ge_u32 s2, {nwg}")
    a(f"s_cbranch_scc1 {name}_end")
    a("s_load_dwordx16 s[16:31], s[0:1], 0")
    a("s_load_dwordx8 s[32:39], s[0:1], 64")
    a("s_load_dwordx2 s[40:41], s[0:1], 96")

def kernel_end(a, name):
    a.label(f"{name}_end")
    a("s_endpgm")

def kernel_desc(name, nv, na, ns=102):
    acc = (nv + 3) // 4 * 4
    tot = acc + na
    return f""".amdhsa_kernel {name}
  .amdhsa_next_free_vgpr {tot}
  .amdhsa_next_free_sgpr {ns}
  .amdhsa_accum_offset {acc}
  .amdhsa_group_segment_fixed_size 0
  .amdhsa_kernarg_size 104
  .amdhsa_user_sgpr_count 2
  .amdhsa_user_sgpr_kernarg_segment_ptr 1
  .amdhsa_system_sgpr_workgroup_id_x 1
.end_amdhsa_kernel
"""

def srd(a, d, ptr, size):
    a(f"s_mov_b32 s{d}, s{ptr}")
    a(f"s_mov_b32 s{d+1}, s{ptr+1}")
    a(f"s_mov_b32 s{d+2}, {size}")
    a(f"s_mov_b32 s{d+3}, 0x20000")

def vr(b, n=1):
    return f"v{b}" if n == 1 else f"v[{b}:{b+n-1}]"
def ar(b, n=1):
    return f"a{b}" if n == 1 else f"a[{b}:{b+n-1}]"
def sr(b, n=1):
    return f"s{b}" if n == 1 else f"s[{b}:{b+n-1}]"

def mfma16(d, A, B, c=None):
    c = d if c is None else c
    return f"v_mfma_f32_16x16x32_bf16 {d}, {A}, {B}, {c}"
def mfma32(d, A, B, c=None):
    c = d if c is None else c
    return f"v_mfma_f32_32x32x16_bf16 {d}, {A}, {B}, {c}"

def gelu_pairs(a, src, dst, npairs, tmp, sK1, sK2, sOne, pre=None):
    G = 4
    for i0 in range(0, npairs, G):
        idx = list(range(i0, min(npairs, i0 + G)))
        T = {i: tmp + 2 * (i - i0) for i in idx}
        if pre:
            for stage in range(2):
                for i in idx: a(pre(i, stage))
        for i in idx: a(f"v_pk_mul_f32 {vr(T[i],2)}, {vr(src[i],2)}, {vr(src[i],2)}")
        for i in idx: a(f"v_pk_fma_f32 {vr(T[i],2)}, {vr(T[i],2)}, {sr(sK2,2)}, {vr(sK1,2)}")
        for i in idx: a(f"v_pk_mul_f32 {vr(T[i],2)}, {vr(T[i],2)}, {vr(src[i],2)}")
        for i in idx:
            a(f"v_exp_f32 {vr(T[i])}, {vr(T[i])}"); a(f"v_exp_f32 {vr(T[i]+1)}, {vr(T[i]+1)}")
        for i in idx: a(f"v_pk_add_f32 {vr(T[i],2)}, {vr(T[i],2)}, {sr(sOne,2)}")
        for i in idx:
            a(f"v_rcp_f32 {vr(T[i])}, {vr(T[i])}"); a(f"v_rcp_f32 {vr(T[i]+1)}, {vr(T[i]+1)}")
        for i in idx: a(f"v_pk_mul_f32 {vr(T[i],2)}, {vr(T[i],2)}, {vr(src[i],2)}")
        for i in idx: a(f"v_cvt_pk_bf16_f32 {vr(dst[i])}, {vr(T[i])}, {vr(T[i]+1)}")

GELU_K1 = -2.0 * math.sqrt(2.0 / math.pi) * LOG2E
GELU_K2 = GELU_K1 * 0.044715

def softmax_dual(a, P, E, PH, tmp, sL, sNL):
    mx, mn = tmp, tmp + 2
    a(f"v_max3_f32 {vr(mx)}, {vr(P)}, {vr(P+1)}, {vr(P+2)}")
    a(f"v_min3_f32 {vr(mn)}, {vr(P)}, {vr(P+1)}, {vr(P+2)}")
    a(f"v_max3_f32 {vr(mx+1)}, {vr(P+3)}, {vr(P+4)}, {vr(P+5)}")
    a(f"v_min3_f32 {vr(mn+1)}, {vr(P+3)}, {vr(P+4)}, {vr(P+5)}")
    for i in range(6, 18, 4):
        a(f"v_max3_f32 {vr(mx)}, {vr(mx)}, {vr(P+i)}, {vr(P+i+1)}")
        a(f"v_min3_f32 {vr(mn)}, {vr(mn)}, {vr(P+i)}, {vr(P+i+1)}")
        a(f"v_max3_f32 {vr(mx+1)}, {vr(mx+1)}, {vr(P+i+2)}, {vr(P+i+3)}")
        a(f"v_min3_f32 {vr(mn+1)}, {vr(mn+1)}, {vr(P+i+2)}, {vr(P+i+3)}")
    a(f"v_max3_f32 {vr(mx)}, {vr(mx)}, {vr(P+18)}, {vr(P+19)}")
    a(f"v_min3_f32 {vr(mn)}, {vr(mn)}, {vr(P+18)}, {vr(P+19)}")
    a(f"v_max_f32 {vr(mx)}, {vr(mx)}, {vr(mx+1)}")
    a(f"v_min_f32 {vr(mn)}, {vr(mn)}, {vr(mn+1)}")
    a(f"v_mul_f32 {vr(mx)}, {sr(sNL)}, {vr(mx)}")
    a(f"v_mul_f32 {vr(mn)}, {sr(sL)}, {vr(mn)}")
    for i in range(10):
        a(f"v_pk_fma_f32 {vr(E+2*i,2)}, {vr(P+2*i,2)}, {sr(sL,2)}, {vr(mx,2)} op_sel_hi:[1,1,0]")
        a(f"v_pk_fma_f32 {vr(E+20+2*i,2)}, {vr(P+2*i,2)}, {sr(sNL,2)}, {vr(mn,2)} op_sel_hi:[1,1,0]")
    for i in range(40): a(f"v_exp_f32 {vr(E+i)}, {vr(E+i)}")
    s0, s1 = tmp + 4, tmp + 6
    a(f"v_pk_add_f32 {vr(s0,2)}, {vr(E,2)}, {vr(E+2,2)}")
    a(f"v_pk_add_f32 {vr(s1,2)}, {vr(E+20,2)}, {vr(E+22,2)}")
    a(f"v_pk_add_f32 {vr(mx,2)}, {vr(E+4,2)}, {vr(E+6,2)}")
    a(f"v_pk_add_f32 {vr(mn,2)}, {vr(E+24,2)}, {vr(E+26,2)}")
    for i in range(4, 10, 2):
        a(f"v_pk_add_f32 {vr(s0,2)}, {vr(s0,2)}, {vr(E+2*i,2)}")
        a(f"v_pk_add_f32 {vr(s1,2)}, {vr(s1,2)}, {vr(E+20+2*i,2)}")
        a(f"v_pk_add_f32 {vr(mx,2)}, {vr(mx,2)}, {vr(E+2*i+2,2)}")
        a(f"v_pk_add_f32 {vr(mn,2)}, {vr(mn,2)}, {vr(E+20+2*i+2,2)}")
    a(f"v_pk_add_f32 {vr(s0,2)}, {vr(s0,2)}, {vr(mx,2)}")
    a(f"v_pk_add_f32 {vr(s1,2)}, {vr(s1,2)}, {vr(mn,2)}")
    a(f"v_add_f32 {vr(s0)}, {vr(s0)}, {vr(s0+1)}")
    a(f"v_add_f32 {vr(s1)}, {vr(s1)}, {vr(s1+1)}")
    a(f"v_rcp_f32 {vr(s0)}, {vr(s0)}")
    a(f"v_rcp_f32 {vr(s1)}, {vr(s1)}")
    for i in range(10):
        a(f"v_pk_mul_f32 {vr(E+2*i,2)}, {vr(E+2*i,2)}, {vr(s0,2)} op_sel_hi:[1,0]")
        a(f"v_pk_mul_f32 {vr(E+20+2*i,2)}, {vr(E+20+2*i,2)}, {vr(s1,2)} op_sel_hi:[1,0]")
    for i in range(20): a(f"v_cvt_pk_bf16_f32 {vr(PH+i)}, {vr(E+2*i)}, {vr(E+2*i+1)}")

def unpack_bf16(a, src, dst, n, sMask):
    for i in range(n):
        a(f"v_lshlrev_b32 {vr(dst+2*i)}, 16, {vr(src+i)}")
        a(f"v_and_b32 {vr(dst+2*i+1)}, {sr(sMask)}, {vr(src+i)}")

def allreduce4(a, x, t):
    a(f"v_mov_b32 {vr(t)}, {vr(x)}")
    a(f"v_permlane16_swap_b32 {vr(x)}, {vr(t)}")
    a(f"v_add_f32 {vr(x)}, {vr(x)}, {vr(t)}")
    a(f"v_mov_b32 {vr(t)}, {vr(x)}")
    a(f"v_permlane32_swap_b32 {vr(x)}, {vr(t)}")
    a(f"v_add_f32 {vr(x)}, {vr(x)}, {vr(t)}")
```

```python
from common import *

K1_LDS = 163840
STG = 36864
SP = 4 * STG
NAME = "k1_kernel"

sXCD, sJ, sRB, sCT, sSTR, sKOFF, sDEL, sW = 3, 4, 5, 6, 7, 8, 9, 10
sKN, sCNT, sDSL, sRSL, sSA, sSB, sT0, sT1, sT2 = 11, 12, 13, 14, 15, 42, 43, 60, 61
SRD_X, SRD_B, SRD_WS, SRD_AUX = 44, 48, 52, 56
sM0A, sM0B = 62, 63
sC = 64
sCQ = 80; sIDX = 81
ACC = 0
XR, XQ, XC = 80, 88, 96
vL, vM, vG, vR, vCc, vTID = 204, 205, 206, 207, 208, 209
vDA = 210
vDB = 214
vTE0, vTO0, vXA0c, vXA1c, vCS0 = 219, 220, 221, 222, 223
vTE, vTO, vXA0, vXA1, vCS = 226, 227, 228, 229, 230
vWP = 234
vWPA = 242
vT = 244
WS0, WS1, XS0, XS1, CS0, CS1, ONES, WB = 0, 40, 80, 88, 96, 108, 120, 128

def acc(mt, t): return ACC + (mt * 10 + t) * 4

def reads(st, k32, ext):
    W = (WS0, WS1)[st]; X = (XS0, XS1)[st]; C = (CS0, CS1)[st]
    xa = (vXA0, vXA1)[k32]
    L = [f"ds_read_b128 {ar(X+4*mt,4)}, {vr(xa)} offset:{mt*2048}" for mt in range(2)]
    for t in range(10):
        b = (vTE, vTO)[t & 1]
        L.append(f"ds_read_b64_tr_b16 {ar(W+4*t,2)}, {vr(b)} offset:{k32*10240 + t*32}")
        L.append(f"ds_read_b64_tr_b16 {ar(W+4*t+2,2)}, {vr(b)} offset:{k32*10240 + t*32 + 5120}")
    if ext:
        for i in range(3):
            L.append(f"ds_read_b64_tr_b16 {ar(C+4*i,2)}, {vr(vCS+i)} offset:{k32*10240}")
            L.append(f"ds_read_b64_tr_b16 {ar(C+4*i+2,2)}, {vr(vCS+i)} offset:{k32*10240 + 5120}")
    return L

def mfmas(st, ext):
    W = (WS0, WS1)[st]; X = (XS0, XS1)[st]; C = (CS0, CS1)[st]
    L = []
    for t in range(10):
        for mt in range(2):
            L.append(mfma16(vr(acc(mt, t), 4), ar(W+4*t, 4), ar(X+4*mt, 4)))
    if ext:
        for mt in range(2):
            L.append(mfma16(vr(XR+4*mt, 4), ar(ONES, 4), ar(X+4*mt, 4)))
            L.append(mfma16(vr(XQ+4*mt, 4), ar(X+4*mt, 4), ar(X+4*mt, 4)))
        for i in range(3):
            L.append(mfma16(vr(XC+4*i, 4), ar(C+4*i, 4), ar(ONES, 4)))
    return L

def dma_issue():
    L = []
    L.append(f"s_lshl_b32 s{sSA}, s{sKN}, 7")
    L.append(f"s_mul_i32 s{sSB}, s{sKN}, s{sT2}")
    L.append(f"s_cmp_lt_u32 s{sCNT}, 10")
    L.append(f"s_cselect_b32 s{sSA}, s{sSA}, s{sC+15}")
    L.append(f"s_cselect_b32 s{sSB}, s{sSB}, s{sC+15}")
    L.append(f"s_add_u32 m0, s{sDSL}, s{sM0A}")
    L.append(f"s_add_u32 s{sCNT}, s{sCNT}, 1")
    for i in range(4):
        L.append(f"buffer_load_dwordx4 {vr(vDA+i)}, {sr(SRD_X,4)}, s{sSA} offen offset:{i*1024} lds")
    L.append(f"s_add_u32 m0, s{sDSL}, s{sM0B}")
    L.append(f"s_add_u32 s{sKN}, s{sKN}, 1")
    for i in range(4):
        L.append(f"buffer_load_dwordx4 {vr(vDB+i)}, {sr(SRD_B,4)}, s{sSB} offen offset:{i*1024} lds")
    L.append(f"s_add_u32 m0, m0, 4096")
    L.append(f"s_cmp_eq_u32 s{sKN}, 10")
    L.append(f"buffer_load_dwordx4 {vr(vDB+4)}, {sr(SRD_B,4)}, s{sSB} offen lds")
    L.append(f"s_cselect_b32 s{sKN}, 0, s{sKN}")
    L.append(f"s_add_u32 s{sDSL}, s{sDSL}, {STG}")
    L.append(f"s_cmp_eq_u32 s{sDSL}, {4*STG}")
    L.append(f"s_cselect_b32 s{sDSL}, 0, s{sDSL}")
    return L

def half(a, st, rd, extra, ext):
    M = mfmas(st, ext)
    nprev = 28 if ext else 22
    a(f"s_waitcnt lgkmcnt({min(15, nprev - 12)})")
    ri = 0; ei = 0
    for i, m in enumerate(M):
        if i == 10:
            a(f"s_waitcnt lgkmcnt({min(15, ri)})")
        a(m)
        k = 2 if (i < 2 or (ext and not extra and i < 4)) else 1
        for _ in range(k):
            if ri < len(rd): a(rd[ri]); ri += 1
        if i >= 2:
            if ei < len(extra): a(extra[ei]); ei += 1
            if ei < len(extra) and extra[ei].startswith('s_') and i >= 2 and len(extra) - ei > len(M) - i - 1:
                a(extra[ei]); ei += 1
    while ri < len(rd): a(rd[ri]); ri += 1
    while ei < len(extra): a(extra[ei]); ei += 1

def main_loop(a, ext, final_reads):
    lab = a.newlabel("k1loop")
    a(f"s_mov_b32 s{sT0}, 0")
    a.raw(".p2align 3")
    a.label(lab)
    half(a, 0, reads(1, 1, ext), [], ext)
    a(f"s_add_u32 s{sRSL}, s{sRSL}, {STG}")
    a(f"s_cmp_eq_u32 s{sRSL}, {4*STG}")
    a(f"s_cselect_b32 s{sRSL}, 0, s{sRSL}")
    a(f"v_add_u32 {vr(vXA0)}, s{sRSL}, {vr(vXA0c)}")
    a(f"v_add_u32 {vr(vXA1)}, s{sRSL}, {vr(vXA1c)}")
    a(f"v_add_u32 {vr(vTE)}, s{sRSL}, {vr(vTE0)}")
    a(f"v_add_u32 {vr(vTO)}, s{sRSL}, {vr(vTO0)}")
    if ext:
        for i in range(3): a(f"v_add_u32 {vr(vCS+i)}, s{sRSL}, {vr(vCS0+i)}")
    a("s_waitcnt vmcnt(9)")
    a("s_barrier")
    half(a, 1, reads(0, 0, ext), dma_issue(), ext)
    a(f"s_add_u32 s{sT0}, s{sT0}, 1")
    a(f"s_cmp_lt_u32 s{sT0}, 9")
    a(f"s_cbranch_scc1 {lab}")
    half(a, 0, reads(1, 1, ext), [], ext)
    half(a, 1, final_reads, [], ext)

def wblk_reads(base):
    L = []
    for u in range(5):
        for s in range(3):
            f = WB + (u*3 + s) * 4
            L.append(f"ds_read_b64_tr_b16 {ar(f,2)}, {vr(vT+11)} offset:{base + s*5120 + u*32}")
            L.append(f"ds_read_b64_tr_b16 {ar(f+2,2)}, {vr(vT+11)} offset:{base + s*5120 + 2560 + u*32}")
    return L

def pack_and_p(a, t0, PK, P):
    for mt in range(2):
        for t in range(5):
            for h in range(2):
                a(f"v_cvt_pk_bf16_f32 {vr(PK+12*mt+2*t+h)}, {vr(acc(mt,t0+t)+2*h)}, {vr(acc(mt,t0+t)+2*h+1)}")
        a(f"v_mov_b32 {vr(PK+12*mt+10)}, 0"); a(f"v_mov_b32 {vr(PK+12*mt+11)}, 0")
    for s in range(3):
        for mt in range(2):
            for u in range(5):
                d = vr(P+20*mt+4*u, 4)
                a(mfma16(d, ar(WB+(u*3+s)*4, 4), vr(PK+12*mt+4*s, 4), "0" if s == 0 else d))

def gen_k1(a):
    kernel_begin(a, NAME, 256)
    a(f"s_and_b32 s{sXCD}, s2, 7\ns_lshr_b32 s{sJ}, s2, 3")
    a(f"s_and_b32 s{sRB}, s{sXCD}, 3\ns_lshl_b32 s{sRB}, s{sRB}, 2\ns_and_b32 s{sT0}, s{sJ}, 3\ns_add_u32 s{sRB}, s{sRB}, s{sT0}")
    a(f"s_lshr_b32 s{sCT}, s{sXCD}, 2\ns_lshl_b32 s{sCT}, s{sCT}, 3\ns_lshr_b32 s{sT0}, s{sJ}, 2\ns_add_u32 s{sCT}, s{sCT}, s{sT0}")
    a(f"s_and_b32 s{sCQ}, s{sCT}, 3")
    a(f"s_mul_i32 s{sT0}, s{sCT}, 160\ns_add_u32 s{sT0}, s{sT0}, 1280\ns_mul_i32 s{sT1}, s{sCQ}, 320")
    a(f"s_cmp_lt_u32 s{sCT}, 8\ns_cselect_b32 s{sKOFF}, s{sT0}, s{sT1}\ns_cselect_b32 s{sDEL}, 1120, 0")
    a(f"s_movk_i32 s{sSTR}, 1280\ns_cmp_lt_u32 s{sCT}, 12\ns_cselect_b32 s{sSTR}, 3840, s{sSTR}")
    a(f"s_lshl_b32 s{sT2}, s{sSTR}, 6")
    a(f"s_add_u32 s{sKN}, s{sRB}, s{sCT}\ns_mul_i32 s{sT0}, s{sKN}, 6554\ns_lshr_b32 s{sT0}, s{sT0}, 16\ns_mul_i32 s{sT0}, s{sT0}, 10\ns_sub_u32 s{sKN}, s{sKN}, s{sT0}")
    a(f"s_mov_b32 s{sCNT}, 0\ns_mov_b32 s{sDSL}, 0\ns_mov_b32 s{sRSL}, 0\ns_mov_b32 s{sC+15}, {OOB}")
    a(f"v_lshrrev_b32 {vr(vT)}, 6, v0\nv_and_b32 {vr(vL)}, 63, v0\nv_mov_b32 {vr(vTID)}, v0\nv_readfirstlane_b32 s{sW}, {vr(vT)}")
    a(f"v_and_b32 {vr(vM)}, 15, {vr(vL)}\nv_lshrrev_b32 {vr(vG)}, 4, {vr(vL)}\nv_bfe_u32 {vr(vR)}, {vr(vL)}, 2, 2\nv_and_b32 {vr(vCc)}, 3, {vr(vL)}")
    a(f"s_lshl_b32 s{sM0A}, s{sW}, 12\ns_mul_i32 s{sM0B}, s{sW}, 5120\ns_add_u32 s{sM0B}, s{sM0B}, 16384")
    a(f"s_lshl_b32 s{sT0}, s{sRB}, 7\ns_lshl_b32 s{sT1}, s{sW}, 5\ns_add_u32 s{sT0}, s{sT0}, s{sT1}")
    a(f"v_lshrrev_b32 {vr(vT)}, 3, {vr(vL)}\nv_add_u32 {vr(vT)}, s{sT0}, {vr(vT)}\nv_mul_u32_u24 {vr(vT)}, 1280, {vr(vT)}")
    a(f"v_and_b32 {vr(vT+1)}, 7, {vr(vL)}\nv_xor_b32 {vr(vT+1)}, {vr(vT+1)}, {vr(vG)}")
    a(f"v_lshl_add_u32 {vr(vDA)}, {vr(vT+1)}, 4, {vr(vT)}")
    a(f"v_xor_b32 {vr(vT+1)}, 4, {vr(vT+1)}\nv_lshl_add_u32 {vr(vDA+1)}, {vr(vT+1)}, 4, {vr(vT)}")
    a(f"v_add_u32 {vr(vDA+1)}, {10240-1024}, {vr(vDA+1)}")
    a(f"v_add_u32 {vr(vDA+2)}, {2*(10240-1024)}, {vr(vDA)}\nv_add_u32 {vr(vDA+3)}, {2*(10240-1024)}, {vr(vDA+1)}")
    a(f"s_mul_i32 s{sT1}, s{sW}, 320")
    for i in range(5):
        c, p, x, k = vT, vT+1, vT+2, vT+3
        a(f"v_add_u32 {vr(c)}, s{sT1}, {vr(vL)}")
        if i: a(f"v_add_u32 {vr(c)}, {64*i}, {vr(c)}")
        a(f"v_mul_u32_u24 {vr(p)}, 3277, {vr(c)}\nv_lshrrev_b32 {vr(p)}, 16, {vr(p)}")
        a(f"v_mul_u32_u24 {vr(x)}, 20, {vr(p)}\nv_sub_u32 {vr(c)}, {vr(c)}, {vr(x)}")
        a(f"v_lshrrev_b32 {vr(x)}, 1, {vr(p)}\nv_and_b32 {vr(x)}, 2, {vr(x)}\nv_xor_b32 {vr(c)}, {vr(c)}, {vr(x)}")
        a(f"v_and_b32 {vr(k)}, 35, {vr(p)}\nv_and_b32 {vr(x)}, 12, {vr(p)}\nv_lshl_or_b32 {vr(k)}, {vr(x)}, 1, {vr(k)}")
        a(f"v_bfe_u32 {vr(x)}, {vr(p)}, 4, 1\nv_lshl_or_b32 {vr(k)}, {vr(x)}, 2, {vr(k)}")
        a(f"v_mul_lo_u32 {vr(k)}, {vr(k)}, s{sSTR}\nv_lshl_add_u32 {vr(k)}, {vr(c)}, 4, {vr(k)}")
        a(f"v_cmp_le_u32 vcc, 10, {vr(c)}\nv_mov_b32 {vr(x)}, s{sDEL}\nv_cndmask_b32 {vr(x)}, 0, {vr(x)}, vcc")
        a(f"v_add3_u32 {vr(vDB+i)}, {vr(k)}, {vr(x)}, s{sKOFF}")
        if i % 4: a(f"v_subrev_u32 {vr(vDB+i)}, {1024*(i%4)}, {vr(vDB+i)}")
    for i in range(2):
        c, n, u, x = vT, vT+1, vT+2, vT+3
        a(f"v_add_u32 {vr(c)}, {256*i}, v0")
        a(f"v_mul_u32_u24 {vr(n)}, 13108, {vr(c)}\nv_lshrrev_b32 {vr(n)}, 16, {vr(n)}")
        a(f"v_mul_u32_u24 {vr(x)}, 5, {vr(n)}\nv_sub_u32 {vr(u)}, {vr(c)}, {vr(x)}")
        a(f"v_mul_u32_u24 {vr(x)}, 3277, {vr(n)}\nv_lshrrev_b32 {vr(x)}, 16, {vr(x)}")
        a(f"v_lshlrev_b32 {vr(x)}, 3, {vr(x)}\nv_lshl_add_u32 {vr(x)}, {vr(u)}, 5, {vr(x)}\nv_mul_u32_u24 {vr(vWPA+i)}, 160, {vr(n)}\nv_add_u32 {vr(vWPA+i)}, {vr(vWPA+i)}, {vr(x)}")
        a(f"v_lshlrev_b32 {vr(vT+4+i)}, 3, {vr(c)}")
        if i == 1:
            a(f"v_cmp_gt_u32 vcc, 400, {vr(c)}\nv_mov_b32 {vr(x)}, s{sC+15}\nv_cndmask_b32 {vr(vT+5)}, {vr(x)}, {vr(vT+5)}, vcc")
            a(f"v_mov_b32 {vr(x)}, {96*160}\nv_cndmask_b32 {vr(vWPA+1)}, {vr(x)}, {vr(vWPA+1)}, vcc")
    a("s_waitcnt lgkmcnt(0)")
    srd(a, SRD_X, P_X, S*D*2)
    a(f"s_cmp_lt_u32 s{sCT}, 12\ns_cselect_b32 s{SRD_B}, s{P_WQKV}, s{P_W1}\ns_cselect_b32 s{SRD_B+1}, s{P_WQKV+1}, s{P_W1+1}")
    a(f"s_mul_i32 s{SRD_B+2}, s{sSTR}, 640\ns_mov_b32 s{SRD_B+3}, 0x20000")
    srd(a, SRD_AUX, P_WPHI, 32*800)
    srd(a, SRD_WS, P_WS, WS_USED)
    a(f"s_lshl_b32 s{sT0}, s{sCT}, 2\ns_lshl_b32 s{sT1}, s{sCQ}, 3\ns_cmp_lt_u32 s{sCT}, 8\ns_cselect_b32 s{sT0}, s{sT0}, s{sT1}\ns_mul_i32 s{sT0}, s{sT0}, 800\ns_add_u32 s{sT1}, s{sT0}, 3200")
    a(f"buffer_load_dwordx2 {vr(vWP,2)}, {vr(vT+4)}, {sr(SRD_AUX,4)}, s{sT0} offen")
    a(f"buffer_load_dwordx2 {vr(vWP+2,2)}, {vr(vT+5)}, {sr(SRD_AUX,4)}, s{sT0} offen")
    a(f"buffer_load_dwordx2 {vr(vWP+4,2)}, {vr(vT+4)}, {sr(SRD_AUX,4)}, s{sT1} offen")
    a(f"buffer_load_dwordx2 {vr(vWP+6,2)}, {vr(vT+5)}, {sr(SRD_AUX,4)}, s{sT1} offen")
    for _ in range(3):
        for ins in dma_issue(): a(ins)
    a(f"v_lshlrev_b32 {vr(vT)}, 4, v0\nv_add_u32 {vr(vT)}, {SP}, {vr(vT)}")
    for i in range(108): a(f"v_mov_b32 {vr(i)}, 0")
    for i in range(4): a(f"ds_write_b128 {vr(vT)}, {vr(0,4)} offset:{i*4096}")
    for i in range(4): a(f"v_mov_b32 {vr(vT+4)}, 0x3f803f80\nv_accvgpr_write_b32 {ar(ONES+i)}, {vr(vT+4)}")
    p, x = vT+1, vT+2
    a(f"v_lshl_add_u32 {vr(p)}, {vr(vG)}, 2, {vr(vR)}")
    a(f"v_mul_u32_u24 {vr(vT+11)}, 160, {vr(p)}\nv_lshl_add_u32 {vr(vT+11)}, {vr(vCc)}, 3, {vr(vT+11)}")
    a(f"v_mul_u32_u24 {vr(vTE0)}, 320, {vr(p)}\nv_lshl_add_u32 {vr(vTE0)}, {vr(vCc)}, 3, {vr(vTE0)}\nv_add_u32 {vr(vTE0)}, 16384, {vr(vTE0)}")
    a(f"v_and_b32 {vr(x)}, 1, {vr(vG)}\nv_lshlrev_b32 {vr(x)}, 5, {vr(x)}")
    for i in range(3):
        a(f"s_add_u32 s{sT0}, s{sW}, {4*i}\ns_min_u32 s{sT0}, s{sT0}, 9\ns_lshl_b32 s{sT0}, s{sT0}, 5")
        a(f"v_xor_b32 {vr(vT+3)}, s{sT0}, {vr(x)}\nv_add_u32 {vr(vCS0+i)}, {vr(vTE0)}, {vr(vT+3)}\nv_mov_b32 {vr(vCS+i)}, {vr(vCS0+i)}")
    a(f"v_sub_u32 {vr(vTO0)}, {vr(vTE0)}, {vr(x)}\nv_add_u32 {vr(vTE0)}, {vr(vTE0)}, {vr(x)}")
    a(f"v_lshrrev_b32 {vr(x)}, 1, {vr(vM)}\nv_xor_b32 {vr(x)}, {vr(x)}, {vr(vG)}\nv_lshlrev_b32 {vr(x)}, 4, {vr(x)}\nv_lshl_add_u32 {vr(vXA0c)}, {vr(vM)}, 7, {vr(x)}\nv_add_u32 {vr(vXA0c)}, s{sM0A}, {vr(vXA0c)}")
    a(f"v_xor_b32 {vr(vXA1c)}, 64, {vr(vXA0c)}")
    a(f"v_mov_b32 {vr(vTE)}, {vr(vTE0)}\nv_mov_b32 {vr(vTO)}, {vr(vTO0)}\nv_mov_b32 {vr(vXA0)}, {vr(vXA0c)}\nv_mov_b32 {vr(vXA1)}, {vr(vXA1c)}")
    a(f"s_mov_b32 s{sC}, {f2u(LOG2E)}\ns_mov_b32 s{sC+1}, {f2u(LOG2E)}\ns_mov_b32 s{sC+2}, {f2u(-LOG2E)}\ns_mov_b32 s{sC+3}, {f2u(-LOG2E)}")
    a(f"s_mov_b32 s{sC+4}, {f2u(GELU_K2)}\ns_mov_b32 s{sC+5}, {f2u(GELU_K2)}\ns_mov_b32 s{sC+6}, 1.0\ns_mov_b32 s{sC+7}, 1.0\ns_mov_b32 s{sC+8}, 0xffff0000")
    a("s_waitcnt lgkmcnt(0)\ns_barrier\ns_waitcnt vmcnt(27)")
    a(f"v_add_u32 {vr(vT+1)}, {SP}, {vr(vWPA)}\nv_add_u32 {vr(vT+2)}, {SP}, {vr(vWPA+1)}")
    a(f"ds_write_b64 {vr(vT+1)}, {vr(vWP,2)}\nds_write_b64 {vr(vT+2)}, {vr(vWP+2,2)}")
    a("s_waitcnt vmcnt(18) lgkmcnt(0)\ns_barrier")
    a(f"s_cmp_ge_u32 s{sCT}, 12\ns_cbranch_scc1 k1_w1")
    for r in reads(0, 0, False): a(r)
    a(f"v_add_u32 {vr(vT+11)}, {SP}, {vr(vT+11)}")
    main_loop(a, False, wblk_reads(0))
    a(f"s_cmp_ge_u32 s{sCT}, 8\ns_cbranch_scc1 k1_q")
    PK, P, E, PH, TM = 80, 104, 144, 184, 112 - 112 + 244
    PHS, VS, VB = 352, 288, 128 * 352
    a("s_waitcnt lgkmcnt(0)")
    pack_and_p(a, 0, PK, P)
    VP = 0
    for mt in range(2):
        for t in range(5):
            for h in range(2):
                a(f"v_cvt_pk_bf16_f32 {vr(VP+10*mt+2*t+h)}, {vr(acc(mt,5+t)+2*h)}, {vr(acc(mt,5+t)+2*h+1)}")
    row, ap, av = 20, 21, 22
    a(f"s_lshl_b32 s{sT0}, s{sW}, 5\nv_add_u32 {vr(row)}, s{sT0}, {vr(vM)}")
    a(f"v_mul_u32_u24 {vr(ap)}, {PHS}, {vr(row)}\nv_mul_u32_u24 {vr(30)}, 80, {vr(vG)}\nv_add_u32 {vr(ap)}, {vr(ap)}, {vr(30)}")
    a(f"v_mul_u32_u24 {vr(row)}, {VS}, {vr(row)}\nv_add_u32 {vr(row)}, {VB}, {vr(row)}")
    for t in range(5):
        a(f"v_lshl_add_u32 {vr(30)}, {vr(vG)}, 2, {16*t}" if t else f"v_lshlrev_b32 {vr(30)}, 2, {vr(vG)}")
        a(f"v_mul_u32_u24 {vr(31)}, 3277, {vr(30)}\nv_lshrrev_b32 {vr(31)}, 16, {vr(31)}\nv_mul_u32_u24 {vr(31)}, 12, {vr(31)}\nv_add_u32 {vr(30)}, {vr(30)}, {vr(31)}")
        a(f"v_lshl_add_u32 {vr(av+t)}, {vr(30)}, 1, {vr(row)}")
    a(f"v_lshl_add_u32 {vr(27)}, {vr(vG)}, 6, {vr(row)}\nv_mov_b32 {vr(28)}, 0x3f80\nv_mov_b32 {vr(29)}, 0")
    a("s_waitcnt vmcnt(0)\ns_barrier")
    for mt in range(2):
        for t in range(5): a(f"ds_write_b64 {vr(av+t)}, {vr(VP+10*mt+2*t,2)} offset:{mt*16*VS}")
        a(f"ds_write_b64 {vr(27)}, {vr(28,2)} offset:{mt*16*VS + 40}")
    for mt in range(2):
        Pm = P + 20 * mt
        for i in range(10): a(f"v_cvt_pk_bf16_f32 {vr(E+i)}, {vr(Pm+2*i)}, {vr(Pm+2*i+1)}")
        unpack_bf16(a, E, Pm, 10, sC+8)
        PHm = PH if mt == 0 else 40
        softmax_dual(a, Pm, E, PHm, 32, sC, sC+2)
        for i in range(5): a(f"ds_write_b128 {vr(ap)}, {vr(PHm+4*i,4)} offset:{mt*16*PHS + 16*i}")
    pa, pb = 60, 61
    a(f"v_lshl_add_u32 {vr(30)}, {vr(vG)}, 2, {vr(vR)}")
    a(f"s_mul_i32 s{sT0}, s{sW}, 80\nv_mul_u32_u24 {vr(pa)}, {PHS}, {vr(30)}\nv_lshl_add_u32 {vr(pa)}, {vr(vCc)}, 3, {vr(pa)}\nv_add_u32 {vr(pa)}, s{sT0}, {vr(pa)}")
    a(f"s_lshl_b32 s{sT0}, s{sW}, 6\ns_add_u32 s{sT0}, s{sT0}, {VB}\nv_mul_u32_u24 {vr(pb)}, {VS}, {vr(30)}\nv_lshl_add_u32 {vr(pb)}, {vr(vCc)}, 3, {vr(pb)}\nv_add_u32 {vr(pb)}, s{sT0}, {vr(pb)}")
    so = 62
    a(f"v_mul_u32_u24 {vr(so)}, 160, {vr(vM)}\nv_lshl_add_u32 {vr(so)}, {vr(vG)}, 4, {vr(so)}\nv_mov_b32 {vr(30)}, s{sC+15}")
    a(f"v_add_u32 {vr(so+1)}, 2560, {vr(so)}\nv_cmp_gt_u32 vcc, 5, {vr(vM)}\nv_cndmask_b32 {vr(so+1)}, {vr(30)}, {vr(so+1)}, vcc")
    a(f"v_cmp_gt_u32 vcc, 2, {vr(vG)}\nv_cndmask_b32 {vr(so+2)}, {vr(30)}, {vr(so)}, vcc\nv_cndmask_b32 {vr(so+3)}, {vr(30)}, {vr(so+1)}, vcc")
    a(f"s_lshl_b32 s{sT0}, s{sRB}, 5\ns_lshl_b32 s{sT1}, s{sCT}, 2\ns_add_u32 s{sT0}, s{sT0}, s{sT1}\ns_add_u32 s{sT0}, s{sT0}, s{sW}\ns_mul_i32 s{sT0}, s{sT0}, 3360\ns_add_u32 s{sT0}, s{sT0}, {KVP}")
    a("s_waitcnt lgkmcnt(0)\ns_barrier")
    KA = 80
    for ks in range(4):
        for ft in range(3):
            for h in range(2):
                a(f"ds_read_b64_tr_b16 {ar(ks*20+ft*4+2*h,2)}, {vr(pa)} offset:{(32*ks+16*h)*PHS + ft*32}")
        for T in range(2):
            for h in range(2):
                a(f"ds_read_b64_tr_b16 {ar(ks*20+12+T*4+2*h,2)}, {vr(pb)} offset:{(32*ks+16*h)*VS + T*32}")
    for ks in range(4):
        a(f"s_waitcnt lgkmcnt({min(15, 10*(3-ks))})")
        for ft in range(3):
            for T in range(2):
                d = vr(KA + (ft*2+T)*4, 4)
                a(mfma16(d, ar(ks*20+ft*4, 4), ar(ks*20+12+T*4, 4), "0" if ks == 0 else d))
    for ft in range(3):
        for T in range(2):
            a(f"buffer_store_dwordx4 {vr(KA+(ft*2+T)*4,4)}, {vr(so + T + (2 if ft == 2 else 0))}, {sr(SRD_WS,4)}, s{sT0} offen offset:{ft*64}")
    a("s_endpgm")
    a.label("k1_q")
    PK, P = 80, 104
    a("s_waitcnt lgkmcnt(0)")
    qa, qc = 144, 145
    a(f"s_lshl_b32 s{sT0}, s{sRB}, 7\ns_lshl_b32 s{sT1}, s{sW}, 5\ns_add_u32 s{sT0}, s{sT0}, s{sT1}\ns_lshl_b32 s{sT1}, s{sCQ}, 14\ns_add_u32 s{sT0}, s{sT0}, s{sT1}")
    a(f"v_lshl_add_u32 {vr(qa)}, {vr(vG)}, 11, {vr(vM)}\nv_add_u32 {vr(qa)}, s{sT0}, {vr(qa)}\nv_lshlrev_b32 {vr(qc)}, 3, {vr(qa)}\nv_lshlrev_b32 {vr(qa)}, 4, {vr(qa)}")
    def q_store(hgl):
        O = 148
        a(f"s_mov_b32 s{sT0}, {PQA + hgl*4*2048*16}\ns_mov_b32 s{sT1}, {PQB + hgl*4*2048*16}\ns_mov_b32 s{sSA}, {PQC + hgl*4*2048*8}")
        for mt in range(2):
            for i in range(10): a(f"v_cvt_pk_bf16_f32 {vr(O+12*mt+i)}, {vr(P+20*mt+2*i)}, {vr(P+20*mt+2*i+1)}")
            a(f"buffer_store_dwordx4 {vr(O+12*mt,4)}, {vr(qa)}, {sr(SRD_WS,4)}, s{sT0} offen offset:{mt*256}")
            a(f"buffer_store_dwordx4 {vr(O+12*mt+4,4)}, {vr(qa)}, {sr(SRD_WS,4)}, s{sT1} offen offset:{mt*256}")
            a(f"buffer_store_dwordx2 {vr(O+12*mt+8,2)}, {vr(qc)}, {sr(SRD_WS,4)}, s{sSA} offen offset:{mt*128}")
    pack_and_p(a, 0, PK, P)
    a("s_waitcnt vmcnt(0)\ns_barrier")
    a(f"v_lshlrev_b32 {vr(vT)}, 4, {vr(vTID)}")
    for i in range(4): a(f"v_mov_b32 {vr(vT+4+i)}, 0")
    for i in range(4): a(f"ds_write_b128 {vr(vT)}, {vr(vT+4,4)} offset:{i*4096}")
    a("s_waitcnt lgkmcnt(0)\ns_barrier")
    a(f"ds_write_b64 {vr(vWPA)}, {vr(vWP+4,2)}\nds_write_b64 {vr(vWPA+1)}, {vr(vWP+6,2)}")
    q_store(0)
    a("s_waitcnt lgkmcnt(0)\ns_barrier")
    a(f"v_subrev_u32 {vr(vT+11)}, {SP}, {vr(vT+11)}")
    for r in wblk_reads(0): a(r)
    a("s_waitcnt lgkmcnt(0)")
    pack_and_p(a, 5, PK, P)
    q_store(1)
    a(f"s_lshl_b32 s{sIDX}, s{sRB}, 2\ns_add_u32 s{sIDX}, s{sIDX}, s{sCQ}")
    srd(a, SRD_AUX, P_W4, F*D*2)
    srd(a, SRD_B, P_WO, D*D*2)
    a(f"s_mul_i32 s{sT0}, s{sIDX}, 30720\ns_mul_i32 s{sT1}, s{sIDX}, 12800\nv_lshlrev_b32 {vr(0)}, 4, {vr(vTID)}")
    DT = 16
    for i in range(8):
        if i == 7:
            a(f"v_mov_b32 {vr(2)}, s{sC+15}\nv_cmp_gt_u32 vcc, 128, {vr(vTID)}\nv_cndmask_b32 {vr(1)}, {vr(2)}, {vr(0)}, vcc")
        a(f"s_add_u32 s{sSA}, s{sT0}, {i*4096}")
        a(f"buffer_load_dwordx4 {vr(DT+4*i,4)}, {vr(1 if i == 7 else 0)}, {sr(SRD_AUX,4)}, s{sSA} offen")
    for i in range(4):
        if i == 3:
            a(f"v_cmp_gt_u32 vcc, 32, {vr(vTID)}\nv_cndmask_b32 {vr(1)}, {vr(2)}, {vr(0)}, vcc")
        a(f"s_add_u32 s{sSA}, s{sT1}, {i*4096}")
        a(f"buffer_load_dwordx4 {vr(DT+32+4*i,4)}, {vr(1 if i == 3 else 0)}, {sr(SRD_B,4)}, s{sSA} offen")
    AD = 64
    a(f"s_mul_i32 s{sT0}, s{sIDX}, 24\ns_mul_i32 s{sT1}, s{sIDX}, 10")
    for i in range(12):
        w4 = i < 8; ii = i if w4 else i - 8
        idn, rw, ch, cb, x = 3, 4, 5, 6, 7
        a(f"v_add_u32 {vr(idn)}, {256*ii}, {vr(vTID)}")
        a(f"v_mul_u32_u24 {vr(rw)}, 52429, {vr(idn)}\nv_lshrrev_b32 {vr(rw)}, 22, {vr(rw)}")
        a(f"v_mul_u32_u24 {vr(x)}, 80, {vr(rw)}\nv_sub_u32 {vr(ch)}, {vr(idn)}, {vr(x)}")
        if w4:
            a(f"v_add_u32 {vr(rw)}, s{sT0}, {vr(rw)}")
            a(f"v_mul_u32_u24 {vr(cb)}, 6554, {vr(ch)}\nv_lshrrev_b32 {vr(cb)}, 16, {vr(cb)}\nv_mul_u32_u24 {vr(x)}, 10, {vr(cb)}\nv_sub_u32 {vr(ch)}, {vr(ch)}, {vr(x)}")
            a(f"v_mul_u32_u24 {vr(cb)}, 1536, {vr(cb)}\nv_add_u32 {vr(rw)}, {vr(rw)}, {vr(cb)}\nv_mul_u32_u24 {vr(rw)}, 160, {vr(rw)}\nv_lshl_add_u32 {vr(AD+i)}, {vr(ch)}, 4, {vr(rw)}")
            lim = 1920
        else:
            hd, e, sg, iidx = 8, 9, 10, 11
            a(f"v_add_u32 {vr(rw)}, s{sT1}, {vr(rw)}")
            a(f"v_mul_u32_u24 {vr(cb)}, 3277, {vr(ch)}\nv_lshrrev_b32 {vr(cb)}, 16, {vr(cb)}\nv_mul_u32_u24 {vr(x)}, 20, {vr(cb)}\nv_sub_u32 {vr(ch)}, {vr(ch)}, {vr(x)}")
            a(f"v_mul_u32_u24 {vr(hd)}, 3277, {vr(rw)}\nv_lshrrev_b32 {vr(hd)}, 16, {vr(hd)}\nv_mul_u32_u24 {vr(x)}, 20, {vr(hd)}\nv_sub_u32 {vr(e)}, {vr(rw)}, {vr(x)}")
            a(f"v_lshrrev_b32 {vr(x)}, 3, {vr(e)}\nv_lshl_add_u32 {vr(sg)}, {vr(hd)}, 1, {vr(x)}\nv_and_b32 {vr(iidx)}, 7, {vr(e)}")
            a(f"v_lshrrev_b32 {vr(x)}, 1, {vr(hd)}\nv_add_u32 {vr(x)}, 64, {vr(x)}\nv_cmp_gt_u32 vcc, 16, {vr(e)}\nv_cndmask_b32 {vr(sg)}, {vr(x)}, {vr(sg)}, vcc")
            a(f"v_and_b32 {vr(x)}, 1, {vr(hd)}\nv_lshl_add_u32 {vr(x)}, {vr(x)}, 2, {vr(iidx)}\nv_cndmask_b32 {vr(iidx)}, {vr(x)}, {vr(iidx)}, vcc")
            a(f"v_lshrrev_b32 {vr(x)}, 2, {vr(sg)}\nv_lshlrev_b32 {vr(rw)}, 5, {vr(x)}\nv_and_b32 {vr(x)}, 3, {vr(sg)}\nv_lshl_add_u32 {vr(rw)}, {vr(x)}, 2, {vr(rw)}")
            a(f"v_and_b32 {vr(x)}, 3, {vr(iidx)}\nv_add_u32 {vr(rw)}, {vr(rw)}, {vr(x)}\nv_lshrrev_b32 {vr(x)}, 2, {vr(iidx)}\nv_lshl_add_u32 {vr(rw)}, {vr(x)}, 4, {vr(rw)}")
            a(f"v_and_b32 {vr(x)}, 1, {vr(sg)}\nv_lshlrev_b32 {vr(x)}, 1, {vr(x)}\nv_xor_b32 {vr(ch)}, {vr(ch)}, {vr(x)}")
            a(f"v_mul_u32_u24 {vr(cb)}, 640, {vr(cb)}\nv_add_u32 {vr(rw)}, {vr(rw)}, {vr(cb)}\nv_mul_u32_u24 {vr(rw)}, 320, {vr(rw)}\nv_lshl_add_u32 {vr(AD+i)}, {vr(ch)}, 4, {vr(rw)}")
            lim = 800
        if 256 * (ii + 1) > lim:
            a(f"v_cmp_gt_u32 vcc, {lim}, {vr(idn)}\nv_cndmask_b32 {vr(AD+i)}, {vr(2)}, {vr(AD+i)}, vcc")
    a(f"s_mov_b32 s{sT0}, {W4P}\ns_mov_b32 s{sT1}, {WOP}")
    for i in range(12):
        a(f"s_waitcnt vmcnt({11})" if i == 0 else f"s_waitcnt vmcnt(11)")
        a(f"buffer_store_dwordx4 {vr(DT+4*i,4)}, {vr(AD+i)}, {sr(SRD_WS,4)}, s{sT0 if i < 8 else sT1} offen")
    a("s_endpgm")
    a.label("k1_w1")
    for r in reads(0, 0, True): a(r)
    main_loop(a, True, [])
    ca = 112
    a(f"v_lshlrev_b32 {vr(ca)}, 4, {vr(vG)}\nv_add_u32 {vr(ca)}, {SP}, {vr(ca)}\ns_lshl_b32 s{sT0}, s{sW}, 6\nv_add_u32 {vr(ca+1)}, s{sT0}, {vr(ca)}")
    a(f"v_cmp_eq_u32 vcc, 0, {vr(vM)}\ns_and_saveexec_b64 s[{sC+10}:{sC+11}], vcc")
    a(f"ds_write_b128 {vr(ca+1)}, {vr(XC,4)}\nds_write_b128 {vr(ca+1)}, {vr(XC+4,4)} offset:256\nds_write_b128 {vr(ca+1)}, {vr(XC+8,4)} offset:512")
    a(f"s_mov_b64 exec, s[{sC+10}:{sC+11}]")
    mean, rstd = 116, 120
    a(f"v_and_b32 {vr(124)}, 3, {vr(vM)}\nv_lshrrev_b32 {vr(125)}, 2, {vr(vM)}")
    for mt in range(2):
        q = XQ + 4 * mt
        a(f"v_cmp_eq_u32 vcc, 1, {vr(124)}\nv_cndmask_b32 {vr(q)}, {vr(q)}, {vr(q+1)}, vcc")
        a(f"v_cmp_eq_u32 vcc, 2, {vr(124)}\nv_cndmask_b32 {vr(q)}, {vr(q)}, {vr(q+2)}, vcc")
        a(f"v_cmp_eq_u32 vcc, 3, {vr(124)}\nv_cndmask_b32 {vr(q)}, {vr(q)}, {vr(q+3)}, vcc")
        a(f"v_cmp_eq_u32 vcc, {vr(125)}, {vr(vG)}\nv_cndmask_b32 {vr(q)}, 0, {vr(q)}, vcc")
        allreduce4(a, q, 126)
        mu, rs = mean + 2*mt, rstd + 2*mt
        a(f"v_mul_f32 {vr(mu)}, {f2u(1.0/640)}, {vr(XR+4*mt)}\nv_mul_f32 {vr(q)}, {f2u(1.0/640)}, {vr(q)}")
        a(f"v_fma_f32 {vr(q)}, -{vr(mu)}, {vr(mu)}, {vr(q)}\nv_max_f32 {vr(q)}, 0, {vr(q)}\nv_add_f32 {vr(q)}, {f2u(1e-5)}, {vr(q)}\nv_rsq_f32 {vr(rs)}, {vr(q)}")
    a(f"s_lshr_b32 s{sT0}, s{sCQ}, 1\ns_add_u32 s{sT0}, s{sT0}, 1\ns_sub_u32 s{sT1}, 0, s{sT0}\ns_bitcmp1_b32 s{sCQ}, 0\ns_cselect_b32 s{sT0}, s{sT1}, s{sT0}")
    a(f"s_lshl_b32 s{sT1}, s{sRB}, 7\ns_add_u32 s{sT0}, s{sT0}, s{sT1}\ns_lshl_b32 s{sT1}, s{sW}, 5\ns_add_u32 s{sT0}, s{sT0}, s{sT1}")
    ho = 128
    for mt in range(2):
        a(f"v_add_u32 {vr(124)}, s{sT0}, {vr(vM)}")
        if mt: a(f"v_add_u32 {vr(124)}, 16, {vr(124)}")
        a(f"v_cmp_gt_u32 vcc, 0x800, {vr(124)}\nv_cndmask_b32 {vr(rstd+2*mt)}, 0, {vr(rstd+2*mt)}, vcc")
        a(f"v_bfe_u32 {vr(125)}, {vr(124)}, 4, 7\nv_mul_u32_u24 {vr(125)}, 1280, {vr(125)}\nv_and_b32 {vr(124)}, 15, {vr(124)}\nv_lshl_add_u32 {vr(124)}, {vr(vG)}, 4, {vr(124)}")
        a(f"v_add_u32 {vr(124)}, {vr(124)}, {vr(125)}\nv_lshlrev_b32 {vr(ho+mt)}, 4, {vr(124)}")
    a(f"s_mul_i32 s{sT0}, s{sCQ}, 5120\ns_add_u32 s{sT0}, s{sT0}, {HS}\ns_add_u32 s{sT1}, s{sT0}, 4096")
    a(f"v_mov_b32 {vr(130)}, {f2u(GELU_K1)}\nv_mov_b32 {vr(131)}, {f2u(GELU_K1)}")
    a("s_waitcnt lgkmcnt(0)\ns_barrier")
    CSV = 132
    for t in range(10): a(f"ds_read_b128 {vr(CSV+4*t,4)}, {vr(ca)} offset:{t*64}")
    a("s_waitcnt lgkmcnt(0)")
    OUT = 172
    for mt in range(2):
        src = [acc(mt, t) + 2*h for t in range(10) for h in range(2)]
        cs = [CSV + 4*t + 2*h for t in range(10) for h in range(2)]
        OUTm = OUT if mt == 0 else 80
        dst = [OUTm + i for i in range(20)]
        def pre(i, stage, src=src, cs=cs, mt=mt):
            if stage == 0:
                return f"v_pk_fma_f32 {vr(src[i],2)}, {vr(cs[i],2)}, {vr(mean+2*mt,2)}, {vr(src[i],2)} op_sel_hi:[1,0,1] neg_lo:[1,0,0] neg_hi:[1,0,0]"
            return f"v_pk_mul_f32 {vr(src[i],2)}, {vr(src[i],2)}, {vr(rstd+2*mt,2)} op_sel_hi:[1,0]"
        gelu_pairs(a, src, dst, 20, 192, 130, sC+4, sC+6, pre)
        for u in range(5):
            a(f"buffer_store_dwordx4 {vr(OUTm+4*u,4)}, {vr(ho+mt)}, {sr(SRD_WS,4)}, s{sT0 if u < 4 else sT1} offen offset:{(u%4)*1024}")
    kernel_end(a, NAME)
    return kernel_desc(NAME, 256, 192)
```

```python
def _al(x): return (x + 4095) // 4096 * 4096
S, D, F, H = 2048, 640, 1536, 32
_off = 4096
def _alloc(n):
    global _off
    o = _off; _off = _al(_off + n); return o
HS  = _alloc(S * D * 2)
PQA = _alloc(H * S * 16)
PQB = _alloc(H * S * 16)
PQC = _alloc(H * S * 8)
KVP = _alloc(16 * H * 3360)
X1  = _alloc(S * D * 2)
ST  = _alloc(10 * S * 16)
OO  = _alloc(S * D * 2)
H3  = _alloc(S * F * 2)
AO  = _alloc(S * D * 2)
WOP = _alloc(D * D * 2)
W4P = _alloc(F * D * 2)
GG  = _alloc(S * 4)
WS_USED = _off
OOB = 0x7FF00000
```

```python
import sys
from common import *
import k1
def header(launches):
    ref = open('gated_mix__linear_kernel_hedgehog__mixer_s_mlp__prompt.s.ref').read().split('\n')
    hdr = [l for l in ref if l.startswith(';') and '@launch' not in l and 'Override launch' not in l and 'grid=ceil' not in l]
    for (n, g, b, lds) in launches:
        hdr.append(f"; @launch kernel={n} grid=({g},1,1) block=({b},1,1) lds={lds}")
    return '\n'.join(hdr) + '\n.amdgcn_target "amdgcn-amd-amdhsa--gfx950"\n.text\n'
def build(out):
    launches = []; body = ''; descs = ''
    mods = [('k1', k1.gen_k1, k1.NAME, k1.K1_LDS)]
    for m in ('k2', 'k3', 'k4'):
        try:
            mod = __import__(m)
            mods.append((m, mod.gen, mod.NAME, mod.LDS))
        except ImportError:
            pass
    for (_, g, name, lds) in mods:
        a = Asm(); d = g(a); a.finalize()
        body += a.text(); descs += '.p2align 6\n' + d
        launches.append((name, 256, 256, lds))
    open(out, 'w').write(header(launches) + body + '.section .rodata,"a"\n' + descs)
if __name__ == '__main__':
    build(sys.argv[1] if len(sys.argv) > 1 else 'gated_mix__linear_kernel_hedgehog__mixer_s_mlp__prompt.s')
```

```python
from asmlib import *
from layout import *
import math
LOG2E = math.log2(math.e)
import struct
def f2u(x): return struct.unpack('<I', struct.pack('<f', x))[0]

P_X, P_WQKV, P_WPHI, P_WO, P_BX, P_W1, P_W2, P_W3, P_W4, P_GATE, P_OUT, P_DBG, P_WS = [16 + 2*i for i in range(13)]

import os
DIAG = int(os.environ.get("DIAG", "0"))
TSB = 84
TS_OFF = 200 << 20
def stamp(a, i, real=False):
    if DIAG: a(f"s_mem{'real' if real else ''}time s[{TSB+2*i}:{TSB+2*i+1}]")
def stamp_flush(a, kidx):
    if not DIAG: return
    stamp(a, 7, True)
    a("s_waitcnt vmcnt(0) lgkmcnt(0)")
    stamp(a, 6)
    a("s_waitcnt lgkmcnt(0)")
    a(f"s_add_u32 s44, s{P_WS}, {TS_OFF + kidx*131072}\ns_addc_u32 s45, s{P_WS+1}, 0\ns_mov_b32 s46, 131072\ns_mov_b32 s47, 0x20000")
    for i in range(16): a(f"v_mov_b32 v{i}, s{TSB+i}")
    a(f"s_lshl_b32 s3, s2, 3\ns_add_u32 s3, s3, s100\ns_lshl_b32 s3, s3, 6\nv_mov_b32 v16, s3\ns_mov_b64 exec, 1")
    for i in range(4): a(f"buffer_store_dwordx4 v[{4*i}:{4*i+3}], v16, s[44:47], 0 offen offset:{16*i}")

def kernel_begin(a, name, nwg):
    a.raw(f".globl {name}\n.p2align 8\n.type {name},@function")
    a.label(name)
    a(f"s_cmp_ge_u32 s2, {nwg}")
    a(f"s_cbranch_scc1 {name}_end")
    if DIAG:
        for i in range(16): a(f"s_mov_b32 s{TSB+i}, 0")
        stamp(a, 0, True); stamp(a, 1)
        a("v_lshrrev_b32 v1, 6, v0\nv_readfirstlane_b32 s100, v1")
    a("s_load_dwordx16 s[16:31], s[0:1], 0")
    a("s_load_dwordx8 s[32:39], s[0:1], 64")
    a("s_load_dwordx2 s[40:41], s[0:1], 96")

def kernel_end(a, name, kidx=0):
    stamp_flush(a, kidx)
    a.label(f"{name}_end")
    a("s_endpgm")

def kernel_desc(name, nv, na, ns=102):
    acc = (nv + 3) // 4 * 4
    tot = acc + na
    return f""".amdhsa_kernel {name}
  .amdhsa_next_free_vgpr {tot}
  .amdhsa_next_free_sgpr {ns}
  .amdhsa_accum_offset {acc}
  .amdhsa_group_segment_fixed_size 0
  .amdhsa_kernarg_size 104
  .amdhsa_user_sgpr_count 2
  .amdhsa_user_sgpr_kernarg_segment_ptr 1
  .amdhsa_system_sgpr_workgroup_id_x 1
.end_amdhsa_kernel
"""

def srd(a, d, ptr, size):
    a(f"s_mov_b32 s{d}, s{ptr}")
    a(f"s_mov_b32 s{d+1}, s{ptr+1}")
    a(f"s_mov_b32 s{d+2}, {size}")
    a(f"s_mov_b32 s{d+3}, 0x20000")

def vr(b, n=1):
    return f"v{b}" if n == 1 else f"v[{b}:{b+n-1}]"
def ar(b, n=1):
    return f"a{b}" if n == 1 else f"a[{b}:{b+n-1}]"
def sr(b, n=1):
    return f"s{b}" if n == 1 else f"s[{b}:{b+n-1}]"

def mfma16(d, A, B, c=None):
    c = d if c is None else c
    return f"v_mfma_f32_16x16x32_bf16 {d}, {A}, {B}, {c}"
def mfma32(d, A, B, c=None):
    c = d if c is None else c
    return f"v_mfma_f32_32x32x16_bf16 {d}, {A}, {B}, {c}"

def gelu_pairs(a, src, dst, npairs, tmp, sK1, sK2, sOne, pre=None, post=None):
    G = 4
    for i0 in range(0, npairs, G):
        idx = list(range(i0, min(npairs, i0 + G)))
        T = {i: tmp + 2 * (i - i0) for i in idx}
        if pre:
            for stage in range(2):
                for i in idx: a(pre(i, stage))
        for i in idx: a(f"v_pk_mul_f32 {vr(T[i],2)}, {vr(src[i],2)}, {vr(src[i],2)}")
        for i in idx: a(f"v_pk_fma_f32 {vr(T[i],2)}, {vr(T[i],2)}, {sr(sK2,2)}, {vr(sK1,2)}")
        for i in idx: a(f"v_pk_mul_f32 {vr(T[i],2)}, {vr(T[i],2)}, {vr(src[i],2)}")
        for i in idx:
            a(f"v_exp_f32 {vr(T[i])}, {vr(T[i])}"); a(f"v_exp_f32 {vr(T[i]+1)}, {vr(T[i]+1)}")
        for i in idx: a(f"v_pk_add_f32 {vr(T[i],2)}, {vr(T[i],2)}, {sr(sOne,2)}")
        for i in idx:
            a(f"v_rcp_f32 {vr(T[i])}, {vr(T[i])}"); a(f"v_rcp_f32 {vr(T[i]+1)}, {vr(T[i]+1)}")
        for i in idx: a(f"v_pk_mul_f32 {vr(T[i],2)}, {vr(T[i],2)}, {vr(src[i],2)}")
        for i in idx: a(f"v_cvt_pk_bf16_f32 {vr(dst[i])}, {vr(T[i])}, {vr(T[i]+1)}")
        if post: post(i0 // G)

GELU_K1 = -2.0 * math.sqrt(2.0 / math.pi) * LOG2E
GELU_K2 = GELU_K1 * 0.044715

def softmax_dual(a, P, E, PH, tmp, sL, sNL):
    mx, mn = tmp, tmp + 2
    a(f"v_max3_f32 {vr(mx)}, {vr(P)}, {vr(P+1)}, {vr(P+2)}")
    a(f"v_min3_f32 {vr(mn)}, {vr(P)}, {vr(P+1)}, {vr(P+2)}")
    a(f"v_max3_f32 {vr(mx+1)}, {vr(P+3)}, {vr(P+4)}, {vr(P+5)}")
    a(f"v_min3_f32 {vr(mn+1)}, {vr(P+3)}, {vr(P+4)}, {vr(P+5)}")
    for i in range(6, 18, 4):
        a(f"v_max3_f32 {vr(mx)}, {vr(mx)}, {vr(P+i)}, {vr(P+i+1)}")
        a(f"v_min3_f32 {vr(mn)}, {vr(mn)}, {vr(P+i)}, {vr(P+i+1)}")
        a(f"v_max3_f32 {vr(mx+1)}, {vr(mx+1)}, {vr(P+i+2)}, {vr(P+i+3)}")
        a(f"v_min3_f32 {vr(mn+1)}, {vr(mn+1)}, {vr(P+i+2)}, {vr(P+i+3)}")
    a(f"v_max3_f32 {vr(mx)}, {vr(mx)}, {vr(P+18)}, {vr(P+19)}")
    a(f"v_min3_f32 {vr(mn)}, {vr(mn)}, {vr(P+18)}, {vr(P+19)}")
    a(f"v_max_f32 {vr(mx)}, {vr(mx)}, {vr(mx+1)}")
    a(f"v_min_f32 {vr(mn)}, {vr(mn)}, {vr(mn+1)}")
    a(f"v_mul_f32 {vr(mx)}, {sr(sNL)}, {vr(mx)}")
    a(f"v_mul_f32 {vr(mn)}, {sr(sL)}, {vr(mn)}")
    for i in range(10):
        a(f"v_pk_fma_f32 {vr(E+2*i,2)}, {vr(P+2*i,2)}, {sr(sL,2)}, {vr(mx,2)} op_sel_hi:[1,1,0]")
        a(f"v_pk_fma_f32 {vr(E+20+2*i,2)}, {vr(P+2*i,2)}, {sr(sNL,2)}, {vr(mn,2)} op_sel_hi:[1,1,0]")
    for i in range(40): a(f"v_exp_f32 {vr(E+i)}, {vr(E+i)}")
    s0, s1 = tmp + 4, tmp + 6
    a(f"v_pk_add_f32 {vr(s0,2)}, {vr(E,2)}, {vr(E+2,2)}")
    a(f"v_pk_add_f32 {vr(s1,2)}, {vr(E+20,2)}, {vr(E+22,2)}")
    a(f"v_pk_add_f32 {vr(mx,2)}, {vr(E+4,2)}, {vr(E+6,2)}")
    a(f"v_pk_add_f32 {vr(mn,2)}, {vr(E+24,2)}, {vr(E+26,2)}")
    for i in range(4, 10, 2):
        a(f"v_pk_add_f32 {vr(s0,2)}, {vr(s0,2)}, {vr(E+2*i,2)}")
        a(f"v_pk_add_f32 {vr(s1,2)}, {vr(s1,2)}, {vr(E+20+2*i,2)}")
        a(f"v_pk_add_f32 {vr(mx,2)}, {vr(mx,2)}, {vr(E+2*i+2,2)}")
        a(f"v_pk_add_f32 {vr(mn,2)}, {vr(mn,2)}, {vr(E+20+2*i+2,2)}")
    a(f"v_pk_add_f32 {vr(s0,2)}, {vr(s0,2)}, {vr(mx,2)}")
    a(f"v_pk_add_f32 {vr(s1,2)}, {vr(s1,2)}, {vr(mn,2)}")
    a(f"v_add_f32 {vr(s0)}, {vr(s0)}, {vr(s0+1)}")
    a(f"v_add_f32 {vr(s1)}, {vr(s1)}, {vr(s1+1)}")
    a(f"v_rcp_f32 {vr(s0)}, {vr(s0)}")
    a(f"v_rcp_f32 {vr(s1)}, {vr(s1)}")
    for i in range(10):
        a(f"v_pk_mul_f32 {vr(E+2*i,2)}, {vr(E+2*i,2)}, {vr(s0,2)} op_sel_hi:[1,0]")
        a(f"v_pk_mul_f32 {vr(E+20+2*i,2)}, {vr(E+20+2*i,2)}, {vr(s1,2)} op_sel_hi:[1,0]")
    for i in range(20): a(f"v_cvt_pk_bf16_f32 {vr(PH+i)}, {vr(E+2*i)}, {vr(E+2*i+1)}")

def unpack_bf16(a, src, dst, n, sMask):
    for i in range(n):
        a(f"v_lshlrev_b32 {vr(dst+2*i)}, 16, {vr(src+i)}")
        a(f"v_and_b32 {vr(dst+2*i+1)}, {sr(sMask)}, {vr(src+i)}")

def allreduce4(a, x, t):
    a(f"v_mov_b32 {vr(t)}, {vr(x)}")
    a(f"v_permlane16_swap_b32 {vr(x)}, {vr(t)}")
    a(f"v_add_f32 {vr(x)}, {vr(x)}, {vr(t)}")
    a(f"v_mov_b32 {vr(t)}, {vr(x)}")
    a(f"v_permlane32_swap_b32 {vr(x)}, {vr(t)}")
    a(f"v_add_f32 {vr(x)}, {vr(x)}, {vr(t)}")


def code_prefetch(a, sJ, sW, vLane16, vdst, srd, vq=None):
    lab = a.newlabel("pc")
    a(f"s_getpc_b64 s[{srd}:{srd+1}]")
    a.label(lab)
    a(f"s_add_u32 s{srd}, s{srd}, text_begin-{lab}")
    a(f"s_addc_u32 s{srd+1}, s{srd+1}, -1")
    a(f"s_mov_b32 s{srd+2}, text_end-text_begin")
    a(f"s_mov_b32 s{srd+3}, 0x20000")
    a(f"s_lshl_b32 s101, s{sJ}, 2\ns_add_u32 s101, s101, s{sW}\ns_lshl_b32 s101, s101, 10")
    (vq.emit if vq else a)(f"buffer_load_dwordx4 {vr(vdst,4)}, {vr(vLane16)}, {sr(srd,4)}, s101 offen")

def capture(fn):
    t = Asm(); fn(t)
    return [it[1].text for it in t.items if it[0] == 'i']

def l2_prefetch(a, srd, sOff, vLane16, vdst, n, nreg=16):
    for i in range(n):
        a(f"buffer_load_dwordx4 {vr(vdst+4*(i%nreg),4)}, {vr(vLane16)}, {sr(srd,4)}, s{sOff} offen offset:{(i%4)*1024}")
        if i % 4 == 3 and i + 1 < n: a(f"s_add_u32 s{sOff}, s{sOff}, 4096")
```

```python
import sys
from common import *
def header(launches):
    ref = open('gated_mix__linear_kernel_hedgehog__mixer_s_mlp__prompt.s.ref').read().split('\n')
    hdr = [l for l in ref if l.startswith(';') and '@launch' not in l and 'Override launch' not in l and 'grid=ceil' not in l]
    for (n, g, b, lds) in launches:
        hdr.append(f"; @launch kernel={n} grid=({g},1,1) block=({b},1,1) lds={lds}")
    return '\n'.join(hdr) + '\n.amdgcn_target "amdgcn-amd-amdhsa--gfx950"\n.text\n'
THREADS = {}
def build(out):
    launches = []; body = ''; descs = ''
    mods = []
    for m in ('k1', 'k2', 'k3', 'k4'):
        try:
            mod = __import__(m)
            mods.append((m, mod.gen, mod.NAME, mod.LDS))
        except ImportError:
            pass
    for (_, g, name, lds) in mods:
        a = Asm(); d = g(a); a.finalize()
        body += a.text(); descs += '.p2align 6\n' + d
        launches.append((name, 256, THREADS.get(name, 512), lds))
    dup = os.environ.get('DUP')
    if dup:
        L2 = []
        for l in launches:
            L2.append(l)
            if l[0][:2] in dup: L2.append(l)
        launches = L2
    open(out, 'w').write(header(launches) + 'text_begin:\n' + body + 'text_end:\n' + '.section .rodata,"a"\n' + descs)
if __name__ == '__main__':
    build(sys.argv[1] if len(sys.argv) > 1 else 'gated_mix__linear_kernel_hedgehog__mixer_s_mlp__prompt.s')
```
